```python
import torch

def _softmax(x, axis=-1):
    return torch.softmax(x, dim=axis)
def _gelu(x):
    return torch.nn.functional.gelu(x, approximate="tanh")
def _silu(x):
    return torch.nn.functional.silu(x)
def _sigmoid(x):
    return torch.sigmoid(x)
def _layernorm(x, axis=-1, eps=1e-5):
    m = x.mean(dim=axis, keepdim=True)
    v = x.var(dim=axis, keepdim=True, unbiased=False)
    return (x - m) / torch.sqrt(v + eps)
def _scatter_add(tgt, idx, src, axis=0):
    return tgt.clone().index_add_(axis, idx, src)
def _segment_sum(src, seg, n):
    out = torch.zeros((n,) + src.shape[1:], dtype=src.dtype)
    return out.index_add_(0, seg, src)
def _pad(x, pw):
    flat = tuple(v for pair in reversed(pw) for v in pair)
    return torch.nn.functional.pad(x, flat)

kernel_name = 'gated_mix__grouped_kv_mqa__linear_attn_block__prompt'

def setup_inputs():

    _w = (lambda a: (lambda t: t.to(torch.bfloat16) if t.is_floating_point() else t)(torch.as_tensor(a)))
    def _A_setup():
        B, S, D, H = 1, 2048, 512, 32
        Dh = D // H
        return {
            "x": _w((lambda *s: torch.randn(*s, dtype=torch.bfloat16) * 0.05)(B, S, D)),
            "wq": _w((lambda *s: torch.randn(*s, dtype=torch.bfloat16) * 3.2)(D, H * Dh)),
            "wk": _w((lambda *s: torch.randn(*s, dtype=torch.bfloat16) * 3.2)(D, Dh)),
            "wv": _w((lambda *s: torch.randn(*s, dtype=torch.bfloat16) * 0.1)(D, Dh)),
            "wo": _w((lambda *s: torch.randn(*s, dtype=torch.bfloat16) * 0.1)(H * Dh, D)),
        }
    _A_in = _A_setup()

    def _B_setup():
        B, S, D = 1, 2048, 512
        return {
            "x": _w((lambda *s: torch.randn(*s, dtype=torch.bfloat16) * 0.05)(B, S, D)),
            "wqkv": _w((lambda *s: torch.randn(*s, dtype=torch.bfloat16) * 1.6)(D, 3 * D)),
            "wo": _w((lambda *s: torch.randn(*s, dtype=torch.bfloat16) * 0.4)(D, D)),
        }
    _B_in = _B_setup()

    return {
        "A_x": _A_in["x"],
        "A_wq": _A_in["wq"],
        "A_wk": _A_in["wk"],
        "A_wv": _A_in["wv"],
        "A_wo": _A_in["wo"],
        "B_x": _B_in["x"],
        "B_wqkv": _B_in["wqkv"],
        "B_wo": _B_in["wo"],
        "gate_w": _w((lambda *s: torch.randn(*s, dtype=torch.bfloat16) * 0.05)(512) * 16.0),
    }

def reference(A_x, A_wq, A_wk, A_wv, A_wo, B_x, B_wqkv, B_wo, gate_w):
    def _A_ref(x, wq, wk, wv, wo):
        B, S, D = x.shape
        H = 32
        Dh = D // H
        q = (lambda x, *d: x.permute(*d))((x @ wq).reshape(B, S, H, Dh), 0, 2, 1, 3)
        k = x @ wk
        v = x @ wv
        scores = torch.einsum("bhqd,bkd->bhqk", q, k) * (Dh ** -0.5)
        p = _softmax(scores, axis=-1)
        o = torch.einsum("bhqk,bkd->bhqd", p, v)
        return (lambda x, *d: x.permute(*d))(o, 0, 2, 1, 3).reshape(B, S, H * Dh) @ wo

    def _B_ref(x, wqkv, wo):
        B, S, D = x.shape
        H = 32; Dh = D // H
        qkv = (lambda x, *d: x.permute(*d))((x @ wqkv).reshape(B, S, 3, H, Dh), 2, 0, 3, 1, 4)
        q, k, v = qkv[0], qkv[1], qkv[2]
        phi = lambda t: torch.where(t > 0, t + 1, torch.exp(t)) + 1e-6
        pq, pk = phi(q), phi(k)
        kv = torch.einsum("bhsd,bhse->bhde", pk, v)
        z = torch.einsum("bhsd->bhd", pk)
        num = torch.einsum("bhqd,bhde->bhqe", pq, kv)
        den = torch.einsum("bhqd,bhd->bhq", pq, z)[..., None] + 1e-6
        o = num / den
        return (lambda x, *d: x.permute(*d))(o, 0, 2, 1, 3).reshape(B, S, D) @ wo

    x = A_x
    g = _sigmoid((x * gate_w).sum(-1, keepdims=True))
    a = _A_ref(x, A_wq, A_wk, A_wv, A_wo)
    b = _B_ref(x, B_wqkv, B_wo)
    return g * a + (1 - g) * b
```

```python
import re
def regs(tok):
    tok = tok.strip().replace('|','').lstrip('-')
    m = re.fullmatch(r'([vs])\[(\d+):(\d+)\]', tok)
    if m: return {(m.group(1), i) for i in range(int(m.group(2)), int(m.group(3))+1)}
    m = re.fullmatch(r'([vs])(\d+)', tok)
    if m: return {(m.group(1), int(m.group(2)))}
    if tok == 'vcc': return {('s','vcc')}
    if tok in ('exec','exec_lo','exec_hi'): return {('s','exec')}
    if tok == 'm0': return {('s','m0')}
    return set()
TRANS = ('v_exp','v_log','v_rcp','v_rsq','v_sqrt','v_sin','v_cos')
def parse(line):
    line = line.split(';')[0].strip()
    if not line or line.endswith(':') or line.startswith('.'): return None
    p = line.split(None, 1); mn = p[0]
    ops = [x.strip() for x in re.split(r',(?![^\[]*\])', p[1])] if len(p) > 1 else []
    if ops:
        last = ops[-1].split()
        ops[-1] = last[0]; mods = last[1:]
    else: mods = []
    R = [regs(o) for o in ops]
    d = dict(mn=mn, line=line, w=set(), r=set(), k='s', mods=mods)
    allr = lambda xs: set().union(*xs) if xs else set()
    if mn.startswith(('v_mfma','v_smfmac')):
        d['k']='mfma'; d['w']=R[0]; d['ab']=R[1]|R[2]
        d['c'] = R[3] if mn.startswith('v_mfma') else R[0]
        if mn.startswith('v_smfmac'): d['ab'] |= R[3]
        d['r'] = d['ab']|d['c']; d['p'] = 8 if '32x32' in mn else 4
    elif mn.startswith('v_'):
        d['k']='valu'; d['w']=set(R[0]); d['r']=allr(R[1:])
        if mn.startswith(('v_permlane','v_swap')): d['w']=R[0]|R[1]; d['r']=R[0]|R[1]
        if mn.startswith(('v_fmac','v_writelane')): d['r'] |= R[0]
        if '_co_' in mn: d['w'] |= R[1]
    elif mn.startswith('ds_'):
        d['k']='ds'
        if 'read' in mn: d['w']=R[0]; d['r']=allr(R[1:])
        else: d['r']=allr(R)
    elif mn.startswith(('buffer_','global_')):
        d['k']='vmem'
        if 'lds' in mods: d['r']=allr(R)|{('s','m0')}; d['dma']=True
        elif 'load' in mn: d['w']=R[0]; d['r']=allr(R[1:])
        else:
            d['r']=allr(R)
            if 'x4' in mn or 'x3' in mn: d['wide'] = R[0] if mn.startswith('buffer') else R[1]
    else:
        if mn.startswith(('s_cmp','s_waitcnt','s_nop','s_barrier','s_cbranch','s_branch','s_setpc','s_setprio','s_sleep','s_endpgm','s_bitcmp')): d['r']=allr(R)
        else: d['w']=R[0] if R else set(); d['r']=allr(R[1:])
    d['n'] = int(ops[0])+1 if mn=='s_nop' else 1
    return d
def check(lines, timeaware=True):
    I = [x for x in map(parse, lines) if x]
    bad = 0
    for i, a in enumerate(I):
        dist = 0
        for j in range(i+1, min(i+24, len(I))):
            b = I[j]; need = 0; why=''
            V = lambda s: {x for x in s if x[0]=='v'}
            S = lambda s: {x for x in s if x[0]=='s'}
            if a['k']=='valu':
                if b['k']=='mfma' and V(a['w']) & b['r']: need, why = 2, 'valu->mfma'
                if b['mn'].startswith('v_permlane') and V(a['w']) & b['r']: need, why = 2, 'valu->permlane'
                if b['mn'].startswith(('v_readfirstlane','v_readlane')) and V(a['w']) & b['r']: need, why = 1, 'valu->readlane'
                if a['mn'].startswith(TRANS) and b['k']=='valu' and not b['mn'].startswith(TRANS) and V(a['w']) & b['r']: need, why = max(need,1), 'trans->valu'
                if b['k']=='vmem' and S(a['w']) & b['r']: need, why = 5, 'valu sgpr->vmem'
                if b['k']=='valu' and S(a['w']) & b['r']: need, why = 2, 'valu sgpr->valu'
            if a['k']=='mfma':
                p = a['p']
                if b['k']=='mfma':
                    if a['w'] & b['ab']: need, why = p+4, 'mfma->mfma AB'
                    elif a['w'] & b['c'] and (a['w']!=b['c'] or b['p']!=p): need, why = p+2, 'mfma->mfma C overlap'
                elif b['k'] in ('valu','ds','vmem') and a['w'] & (b['r']|b['w']): need, why = p+4, 'mfma->valu/mem'
                if b['k']=='valu' and a['c'] & b['w'] and not need: need, why = p-1, 'mfma C WAR'
            if a['k']=='s' and ('s','m0') in a['w'] and b.get('dma'): need, why = 1, 'm0->dma'
            if a.get('wide') and b['k']=='valu' and a['wide'] & b['w']: need, why = 2, 'store WAR'
            if need > dist:
                print(f'HAZARD {why} need {need} have {dist}:\n   {a["line"]}\n   {b["line"]}'); bad += 1
            dist += b['n'] + (1 if timeaware and b['mn'].startswith(TRANS) else 0)
            if b['mn'] in ('s_branch','s_setpc_b64','s_endpgm'): break
    print(f'hazard check: {len(I)} instrs, {bad} findings')
    return bad
```

```python
import sys, struct

NAME = 'gated_mix__grouped_kv_mqa__linear_attn_block__prompt'

def f2u(x): return struct.unpack('<I', struct.pack('<f', x))[0]

WS_EPOCH = 0x0
WS_F1 = 0x1000; F1_STRIDE = 4096 + 256
WS_F2 = 0xA000
WS_F3 = 0xB000
WS_G = 0xC000
WS_KVACC = 0x10000
WS_KV = 0x20000
WS_STAMP = 0x80000
WS_OB = 0x100000
WS_OA = 0x300000
WS_SIZE = 0x500000
L_WKV = 0
L_SCR = 16384
L_SCRG = L_SCR + 8192
L_WQ = 32768
L_X = 98304
L_KV = 31744; TS = 2064
L_WOB = 0
L_WOA = 65536
L_RED = 131072
LDS_SIZE = 163840

OFF = 90.0
VSC = 48
LOG2E = 1.4426950408889634
POLL_MAX = 200000

sPX, sPWQ, sPWK, sPWV, sPWOA, sPBX, sPWQKV, sPWOB = 4, 6, 8, 10, 12, 14, 16, 18
sPG, sPOUT, sPDBG, sPWS = 20, 22, 24, 26
SX, SW, SWS, SO = 28, 32, 36, 40
sW, sRB, sHG, sXCD, sJ, sTAG, sRT, sCT = 44, 45, 46, 47, 48, 49, 50, 51
sT0, sT1, sT2, sT3, sT4, sT5 = 52, 53, 54, 55, 56, 57
sSRC, sSTEP = 58, 59
sRET = 60
sCNT, sEPS, sOOFF, sFB = 62, 63, 64, 65
sK0 = 66
sLOOP = 68
sID = 69
sMSK = 70
sST = 72
sSTB = 74
vL = 0; vL16 = 1; vXE = 2; vXO = 3; vWD = 4; vWA = 5; vWB = 6; vGF = 7
vT0, vT1, vT2, vT3, vT4, vT5, vT6, vT7 = 8, 9, 10, 11, 12, 13, 14, 15
vACC0 = 16; vACC1 = 32
vSA = 48; vSB = 64
vNA = 80; vNB = 96
vRING = 112
vXF = 128
vQ = 128; vK = 136; vV0 = 144; vV1 = 152; vIDX = 160; vAK = 161; vAV0 = 162; vAV1 = 163
vPK = 80; vVB = 88; vPQ = 96; vONE = 104
vOB = 128; vSAVE = 192


class Gen:
    def __init__(self, stamps=False, opts=None):
        self.L = []
        self.stamps = stamps
        self.o = opts or {}
        self.nlab = 0

    def __call__(self, s):
        for line in s.split('\n'):
            line = line.strip()
            if line:
                self.L.append(line if line.endswith(':') or line.startswith('.') else '    ' + line)

    def lab(self, p):
        self.nlab += 1
        return f'L_{p}{self.nlab}'

    def stamp(self, i):
        if not self.stamps: return
        self(f's_memrealtime s[{sST}:{sST+1}]')
        self('s_waitcnt lgkmcnt(0)')
        self(f'v_writelane_b32 v{vT7}, s{sST}, {i}')

    def srd(self, d, p, size):
        self(f's_mov_b32 s{d}, s{p}')
        self(f's_mov_b32 s{d+1}, s{p+1}')
        self(f's_mov_b32 s{d+2}, {size:#x}')


def vr(a, n): return f'v[{a}:{a+n-1}]'
def sr(a, n): return f's[{a}:{a+n-1}]'
def MF32(d, a, b, c): return f'v_mfma_f32_32x32x16_bf16 {vr(d,16)}, {vr(a,4)}, {vr(b,4)}, {c if isinstance(c,str) else vr(c,16)}'
def MF16(d, a, b, c): return f'v_mfma_f32_16x16x32_bf16 {vr(d,4)}, {vr(a,4)}, {vr(b,4)}, {c if isinstance(c,str) else vr(c,4)}'
def SMF(d, a, b): return f'v_smfmac_f32_32x32x32_bf16 {vr(d,16)}, {vr(a,4)}, {vr(b,8)}, v{vIDX}'


def chain(g, transposed):
    def rd(s):
        r = vRING + 4 * (s % 4)
        g(f'ds_read_b64_tr_b16 {vr(r,2)}, v{vWA} offset:{s*2048}')
        g(f'ds_read_b64_tr_b16 {vr(r+2,2)}, v{vWA} offset:{s*2048+512}')
    for s in range(4): rd(s)
    for s in range(32):
        r = vRING + 4 * (s % 4)
        g(f's_waitcnt lgkmcnt({min(6, 2*(31-s))})')
        c = '0' if s == 0 else vSA
        g(MF32(vSA, r, vXF + 4*s, c) if transposed else MF32(vSA, vXF + 4*s, r, c))
        if s + 4 < 32: rd(s + 4)


def phi(g, dst):
    g(f's_mov_b32 s{sK0}, {f2u(LOG2E):#x}')
    g(f's_mov_b32 s{sK0+1}, {f2u(1e-6):#x}')
    for i in range(0, 16, 2):
        g(f'v_pk_mul_f32 {vr(vSB+i,2)}, {vr(vSA+i,2)}, {sr(sK0,2)} op_sel_hi:[1,0]')
    for i in range(16):
        g(f'v_exp_f32_e64 v{vSB+i}, v{vSB+i} clamp')
    for i in range(16):
        g(f'v_max_f32 v{vSA+i}, 0, v{vSA+i}')
    for i in range(0, 16, 2):
        g(f'v_pk_add_f32 {vr(vSA+i,2)}, {vr(vSA+i,2)}, {vr(vSB+i,2)}')
    for i in range(0, 16, 2):
        g(f'v_pk_add_f32 {vr(vSA+i,2)}, {vr(vSA+i,2)}, {sr(sK0,2)} op_sel:[0,1] op_sel_hi:[1,1]')
    for i in range(8):
        g(f'v_cvt_pk_bf16_f32 v{dst+i}, v{vSA+2*i}, v{vSA+2*i+1}')


def poll(g, loads, regs, pre_issued=False):
    lp, ld, lo = g.lab('poll'), g.lab('pchk'), g.lab('pout')
    g(f's_mov_b32 s{sCNT}, {POLL_MAX}')
    if pre_issued: g(f's_branch {ld}')
    g(f'{lp}:')
    for l in loads: g(l)
    g(f'{ld}:')
    g('s_waitcnt vmcnt(0)')
    g(f'v_cmp_ne_u32 vcc, s{sTAG}, v{regs[0]}')
    for r in regs[1:]:
        g(f'v_cmp_ne_u32 {sr(sMSK,2)}, s{sTAG}, v{r}')
        g(f's_or_b64 vcc, vcc, {sr(sMSK,2)}')
    g(f's_sub_u32 s{sCNT}, s{sCNT}, 1')
    g(f's_cbranch_scc1 {lo}')
    g(f's_cbranch_vccnz {lp}')
    g(f'{lo}:')


def gate(g, sign):
    g(f'v_mul_f32 v{vGF}, {f2u(sign*LOG2E):#x}, v{vGF}')
    g(f'v_exp_f32 v{vGF}, v{vGF}')
    g('s_nop 0')
    g(f'v_add_f32 v{vGF}, 1.0, v{vGF}')
    g(f'v_rcp_f32 v{vGF}, v{vGF}')


def wload_call(g, ldsbase, ptr, size, stride, colsreg_shift_src, coloff):
    g.srd(SW, ptr, size)
    g(f's_and_b32 s{sT0}, s{sW}, 3')
    g(f's_mul_i32 s{sSRC}, s{sT0}, {128*stride}')
    g(f's_lshl_b32 s{sT1}, s{colsreg_shift_src}, 7')
    g(f's_add_u32 s{sSRC}, s{sSRC}, s{sT1}')
    if coloff: g(f's_add_u32 s{sSRC}, s{sSRC}, {coloff}')
    g(f's_mov_b32 s{sSTEP}, {8*stride}')
    g(f's_lshl_b32 s{sT0}, s{sT0}, 14')
    g(f's_add_u32 m0, s{sT0}, {ldsbase}')
    g(f's_call_b64 {sr(sRET,2)}, L_wload')
    g(f's_call_b64 {sr(sRET,2)}, L_wload')


def kvload(g, first, n):
    g(f's_and_b32 s{sT0}, s{sW}, 3')
    g(f's_add_u32 s{sT0}, s{sT0}, {first}')
    g(f's_mov_b32 s{sCNT}, {n}')
    g(f's_call_b64 {sr(sRET,2)}, L_kvload')


def pads(g, lo, hi):
    one = (127 + VSC) << 7
    g(f'v_mov_b32 v{vT0}, {(one << 16) | one:#x}')
    g(f'v_mov_b32 v{vT1}, v{vT0}')
    g(f'v_mov_b32 v{vT2}, v{vT0}')
    g(f'v_mov_b32 v{vT3}, v{vT0}')
    g(f'v_mul_u32_u24 v{vT4}, {TS}, v{vL}')
    g(f'v_add_u32 v{vT4}, {L_KV + 2048 + lo*TS}, v{vT4}')
    assert hi - lo == 32
    g('s_mov_b32 exec_hi, 0')
    g(f'ds_write_b128 v{vT4}, {vr(vT0,4)}')
    g('s_mov_b64 exec, -1')


def build(stamps=False, opts=None):
    g = Gen(stamps, opts)
    o = g.o
    g(f'{NAME}_kernel:')
    g('s_cmp_ge_u32 s2, 256')
    g('s_cbranch_scc1 L_end')
    g('s_load_dwordx16 s[4:19], s[0:1], 0')
    g('s_load_dwordx8 s[20:27], s[0:1], 64')
    g(f'v_lshrrev_b32 v{vT0}, 6, v0')
    g(f'v_and_b32 v{vL}, 63, v0')
    g(f'v_readfirstlane_b32 s{sW}, v{vT0}')
    if stamps: g(f'v_mov_b32 v{vT7}, 0')
    g(f's_and_b32 s{sXCD}, s2, 7')
    g(f's_lshr_b32 s{sJ}, s2, 3')
    g(f's_and_b32 s{sHG}, s{sJ}, 7')
    g(f's_lshr_b32 s{sT0}, s{sJ}, 3')
    g(f's_lshl2_add_u32 s{sRB}, s{sXCD}, s{sT0}')
    g(f'v_lshlrev_b32 v{vL16}, 4, v{vL}')
    g(f'v_lshrrev_b32 v{vT0}, 4, v{vL}')
    g(f'v_and_b32 v{vT1}, 7, v{vL}')
    g(f'v_lshrrev_b32 v{vT2}, 3, v{vL}')
    g(f'v_xor_b32 v{vT3}, v{vT0}, v{vT1}')
    g(f'v_lshlrev_b32 v{vT3}, 4, v{vT3}')
    g(f'v_lshl_or_b32 v{vXE}, v{vT2}, 10, v{vT3}')
    g(f'v_xor_b32 v{vXO}, 64, v{vXE}')
    g(f'v_add_u32 v{vXO}, 7168, v{vXO}')
    g(f's_lshl_b32 s{sT1}, s{sW}, 7')
    g(f'v_lshl_add_u32 v{vT4}, v{vT0}, 4, s{sT1}')
    g(f's_and_b32 s{sT2}, s{sHG}, 3')
    g(f's_lshl_b32 s{sT2}, s{sT2}, 11')
    g(f's_lshl_b32 s{sT3}, s{sRB}, 16')
    g(f's_add_u32 s{sT3}, s{sT3}, s{sT1}')
    g(f's_lshl_b32 s{sT4}, s{sW}, 13')
    g(f's_add_u32 s{sT4}, s{sT4}, {L_X}')
    g(f's_lshl_b32 s{sT5}, s{sW}, 11')
    g(f's_mov_b32 m0, s{sT5}')
    g(f's_mov_b32 s{SW+2}, 16384')
    g(f's_mov_b32 s{SW+3}, 0x20000')
    g(f's_mov_b32 s{SX+2}, 0x200000')
    g(f's_mov_b32 s{SX+3}, 0x20000')
    g(f's_cmp_ge_u32 s{sHG}, 4')
    g('s_waitcnt lgkmcnt(0)')
    g(f's_cselect_b32 s{SW}, s{sPWV}, s{sPWK}')
    g(f's_cselect_b32 s{SW+1}, s{sPWV+1}, s{sPWK+1}')
    g(f's_mov_b32 s{SX}, s{sPX}')
    g(f's_mov_b32 s{SX+1}, s{sPX+1}')
    g(f'buffer_load_dwordx4 v{vL16}, {sr(SW,4)}, s{sT5} offen lds')
    g(f'buffer_load_dwordx4 v{vL16}, {sr(SW,4)}, s{sT5} offen offset:1024 lds')
    def xpair(first):
        if not first:
            g(f's_add_u32 s{sT2}, s{sT2}, 0x800')
            g(f's_and_b32 s{sT2}, s{sT2}, 0x1fff')
        g(f's_add_u32 m0, s{sT4}, s{sT2}')
        g(f's_lshl3_add_u32 s{sT0}, s{sT2}, s{sT3}')
        g(f'buffer_load_dwordx4 v{vXE}, {sr(SX,4)}, s{sT0} offen lds')
        g(f'buffer_load_dwordx4 v{vXO}, {sr(SX,4)}, s{sT0} offen offset:1024 lds')
    xpair(True)
    g(f'global_load_dwordx4 {vr(vNA,4)}, v{vT4}, {sr(sPG,2)}')
    g(f'global_load_dwordx4 {vr(vNA+4,4)}, v{vT4}, {sr(sPG,2)} offset:64')
    g(f's_load_dword s{sTAG}, {sr(sPWS,2)}, {WS_EPOCH}')
    xpair(False); xpair(False); xpair(False)
    g.stamp(0)
    g(f'v_lshrrev_b32 v{vT3}, 2, v{vL}')
    g(f'v_and_b32 v{vT3}, 4, v{vT3}')
    g(f'v_xor_b32 v{vT3}, v{vT3}, v{vT1}')
    g(f'v_lshlrev_b32 v{vT3}, 4, v{vT3}')
    g(f'v_lshl_or_b32 v{vWD}, v{vT2}, 10, v{vT3}')
    g.srd(SW, sPWQ, 0x80000)
    g.srd(SWS, sPWS, WS_SIZE)
    g(f's_mov_b32 s{SWS+3}, 0x20000')
    g(f's_lshl_b32 s{sSRC}, s{sW}, 16')
    g(f's_lshl_b32 s{sT0}, s{sHG}, 7')
    g(f's_add_u32 s{sSRC}, s{sSRC}, s{sT0}')
    g(f's_mov_b32 s{sSTEP}, 8192')
    g(f's_lshl_b32 s{sT0}, s{sW}, 13')
    g(f's_add_u32 m0, s{sT0}, {L_WQ}')
    g(f's_cmp_eq_u32 s{sW}, 0')
    g('s_cbranch_scc1 L_nowq')
    g(f's_call_b64 {sr(sRET,2)}, L_wload')
    g('s_branch L_unit')
    g('L_wload:')
    for i in range(8):
        g(f'buffer_load_dwordx4 v{vWD}, {sr(SW,4)}, s{sSRC} offen lds')
        g(f's_addk_i32 m0, 0x400')
        g(f's_add_u32 s{sSRC}, s{sSRC}, s{sSTEP}')
    g(f's_setpc_b64 {sr(sRET,2)}')
    g('L_nowq:')
    g('s_waitcnt vmcnt(6)')
    g('L_unit:')
    g(f'v_and_b32 v{vT1}, 15, v{vL}')
    g(f'v_lshrrev_b32 v{vT2}, 1, v{vT1}')
    g(f'v_xor_b32 v{vT2}, v{vT2}, v{vT0}')
    g(f'v_lshlrev_b32 v{vT2}, 4, v{vT2}')
    g(f'v_lshl_or_b32 v{vT2}, v{vT1}, 7, v{vT2}')
    g(f's_and_b32 s{sT2}, s{sHG}, 3')
    g(f's_lshl_b32 s{sT2}, s{sT2}, 11')
    g(f's_add_u32 s{sT0}, s{sT4}, s{sT2}')
    g(f'v_add_u32 v{vT2}, s{sT0}, v{vT2}')
    g(f'v_xor_b32 v{vT3}, 64, v{vT2}')
    g(f'v_lshlrev_b32 v{vT4}, 8, v{vT0}')
    g(f'v_lshl_or_b32 v{vT4}, v{vT1}, 3, v{vT4}')
    g(f'v_add_u32 v{vT4}, s{sT5}, v{vT4}')
    g(f's_lshl_b32 s{sT0}, s{sW}, 10')
    g(f'v_add_u32 v{vT5}, s{sT0}, v{vL16}')
    g(f's_lshl_b32 s{sT0}, s{sW}, 8')
    g(f'v_lshl_add_u32 v{vT6}, v{vL}, 2, s{sT0}')
    g(f's_and_b32 s{sRT}, s{sW}, 1')
    g(f's_bfe_u32 s{sCT}, s{sW}, 0x10001')
    g(f's_lshl_b32 s{sT0}, s{sXCD}, 5')
    g(f's_add_u32 s{sID}, s{sT0}, s{sJ}')
    g('s_waitcnt vmcnt(14)')
    g(f'ds_read_b128 {vr(16,4)}, v{vT2}')
    g(f'ds_read_b64_tr_b16 {vr(24,2)}, v{vT4}')
    g(f'ds_read_b64_tr_b16 {vr(26,2)}, v{vT4} offset:128')
    g(f'ds_read_b128 {vr(20,4)}, v{vT3}')
    g(f'ds_read_b64_tr_b16 {vr(28,2)}, v{vT4} offset:1024')
    g(f'ds_read_b64_tr_b16 {vr(30,2)}, v{vT4} offset:1152')
    g(f's_cmp_ge_u32 s{sHG}, 4')
    g('s_waitcnt lgkmcnt(0)')
    g(MF16(36, vNA, 16, '0'))
    g(MF16(36, vNA+4, 20, 36))
    g('s_cbranch_scc1 L_unitv')
    g(MF16(32, 24, 16, '0'))
    g(MF16(32, 28, 20, 32))
    g('s_branch L_unitj')
    g('L_unitv:')
    g(MF16(32, 16, 24, '0'))
    g(MF16(32, 20, 28, 32))
    g('L_unitj:')
    g(f's_mul_i32 s{sTAG}, s{sTAG}, 0x9e3779b1')
    g(f's_add_u32 s{sTAG}, s{sTAG}, 0x7f4a7c15')
    g('s_nop 5')
    g(f'ds_write_b128 v{vT5}, {vr(32,4)} offset:{L_SCR}')
    g(f'ds_write_b32 v{vT6}, v36 offset:{L_SCRG}')
    g('s_waitcnt lgkmcnt(0)')
    g('s_barrier')
    g.stamp(1)
    g(f's_cmp_lg_u32 s{sW}, 0')
    g('s_cbranch_scc1 L_nopub')
    g(f'v_lshlrev_b32 v{vT6}, 2, v{vL}')
    for i in range(8):
        g(f'ds_read_b128 {vr(16+4*i,4)}, v{vL16} offset:{L_SCR + 1024*i}')
    for i in range(4):
        g(f'ds_read2st64_b32 {vr(48+2*i,2)}, v{vT6} offset0:{L_SCRG//256 + 2*i} offset1:{L_SCRG//256 + 2*i+1}')
    g(f'v_and_b32 v{vT2}, 1, v{vT0}')
    g(f'v_lshrrev_b32 v{vT3}, 1, v{vT0}')
    g(f's_and_b32 s{sT0}, s{sHG}, 1')
    g(f's_bfe_u32 s{sT1}, s{sHG}, 0x10001')
    g(f's_lshl1_add_u32 s{sT1}, s{sRB}, s{sT1}')
    g(f's_lshl_b32 s{sT1}, s{sT1}, 11')
    g(f's_add_u32 s{sT1}, s{sT1}, {WS_KV}')
    g(f's_cmp_ge_u32 s{sHG}, 4')
    g('s_cbranch_scc1 L_pubv')
    g(f'v_lshlrev_b32 v{vT4}, 9, v{vT2}')
    g(f'v_lshl_or_b32 v{vT4}, v{vT3}, 3, v{vT4}')
    g(f's_lshl_b32 s{sT0}, s{sT0}, 8')
    g(f's_mov_b32 s{sK0}, 1.0')
    g('s_branch L_pubj')
    g('L_pubv:')
    g(f'v_lshlrev_b32 v{vT4}, 8, v{vT3}')
    g(f'v_lshl_or_b32 v{vT4}, v{vT2}, 3, v{vT4}')
    g(f's_lshl_b32 s{sT0}, s{sT0}, 9')
    g(f's_add_u32 s{sT0}, s{sT0}, 1024')
    g(f's_mov_b32 s{sK0}, {(127+VSC)<<23:#x}')
    g('L_pubj:')
    g(f'v_lshl_or_b32 v{vT4}, v{vT1}, 4, v{vT4}')
    g(f's_add_u32 s{sT1}, s{sT1}, s{sT0}')
    g(f'v_mov_b32 v{vT5}, 0')
    g(f's_lshl_b32 s{sT2}, s{sID}, 8')
    g(f's_add_u32 s{sT2}, s{sT2}, {WS_KVACC}')
    g(f'buffer_store_dword v{vT5}, v{vT6}, {sr(SWS,4)}, s{sT2} offen sc1')
    g(f's_and_b32 s{sT0}, s{sHG}, 3')
    g(f's_lshl2_add_u32 s{sT0}, s{sRB}, s{sT0}')
    g(f's_lshl_b32 s{sT0}, s{sT0}, 6')
    g(f's_add_u32 s{sT0}, s{sT0}, {WS_G}')
    g(f's_cmp_ge_u32 s{sHG}, 4')
    g(f's_cselect_b32 s{sT0}, {WS_SIZE}, s{sT0}')
    g('s_waitcnt lgkmcnt(4)')
    for (a, b) in ((16, 20), (24, 28), (32, 36), (40, 44), (16, 24), (32, 40), (16, 32)):
        g(f'v_pk_add_f32 {vr(a,2)}, {vr(a,2)}, {vr(b,2)}')
        g(f'v_pk_add_f32 {vr(a+2,2)}, {vr(a+2,2)}, {vr(b+2,2)}')
    g(f'v_pk_mul_f32 {vr(16,2)}, {vr(16,2)}, {sr(sK0,2)} op_sel_hi:[1,0]')
    g(f'v_pk_mul_f32 {vr(18,2)}, {vr(18,2)}, {sr(sK0,2)} op_sel_hi:[1,0]')
    g('v_cvt_pk_bf16_f32 v16, v16, v17')
    g('v_cvt_pk_bf16_f32 v17, v18, v19')
    g(f'buffer_store_dwordx2 {vr(16,2)}, v{vT4}, {sr(SWS,4)}, s{sT1} offen sc1')
    g('s_waitcnt lgkmcnt(0)')
    g('v_pk_add_f32 v[48:49], v[48:49], v[50:51]')
    g('v_pk_add_f32 v[52:53], v[52:53], v[54:55]')
    g('v_pk_add_f32 v[48:49], v[48:49], v[52:53]')
    g('v_add_f32 v48, v48, v49')
    g('s_mov_b64 exec, 0xffff')
    g(f'buffer_store_dword v48, v{vT6}, {sr(SWS,4)}, s{sT0} offen sc1')
    g('s_mov_b64 exec, -1')
    g(f's_call_b64 {sr(sRET,2)}, L_wload')
    g('s_waitcnt vmcnt(11)')
    g('s_branch L_xcopy')
    g('L_nopub:')
    g('s_waitcnt vmcnt(8)')
    g('L_xcopy:')
    g(f'v_lshrrev_b32 v{vT0}, 5, v{vL}')
    g(f'v_bfe_u32 v{vT1}, v{vL}, 1, 3')
    g(f'v_xor_b32 v{vT1}, v{vT1}, v{vT0}')
    g(f'v_lshlrev_b32 v{vT1}, 4, v{vT1}')
    g(f'v_and_b32 v{vT2}, 31, v{vL}')
    g(f'v_lshl_or_b32 v{vT1}, v{vT2}, 7, v{vT1}')
    g(f's_lshl_b32 s{sT0}, s{sRT}, 12')
    g(f's_add_u32 s{sT0}, s{sT0}, {L_X}')
    g(f'v_add_u32 v{vT1}, s{sT0}, v{vT1}')
    g(f'v_xor_b32 v{vT2}, 32, v{vT1}')
    g(f'v_xor_b32 v{vT3}, 64, v{vT1}')
    g(f'v_xor_b32 v{vT4}, 96, v{vT1}')
    g('s_barrier')
    g.stamp(2)
    for s in range(32):
        g(f'ds_read_b128 {vr(vXF+4*s,4)}, v{vT1 + (s&3)} offset:{(s>>2)*8192}')
    g(f'v_bfe_u32 v{vT5}, v{vL}, 2, 2')
    g(f'v_lshl_add_u32 v{vT6}, v{vT0}, 3, v{vT5}')
    g(f'v_lshlrev_b32 v{vT6}, 7, v{vT6}')
    g(f'v_and_b32 v{vWA}, 3, v{vL}')
    g(f'v_lshl_or_b32 v{vT6}, v{vWA}, 3, v{vT6}')
    g(f'v_and_b32 v{vWA}, 16, v{vL}')
    g(f'v_lshl_or_b32 v{vT6}, v{vWA}, 1, v{vT6}')
    g(f'v_and_b32 v{vWA}, 8, v{vL}')
    g(f'v_lshl_or_b32 v{vWB}, v{vWA}, 3, v{vT6}')
    g(f's_lshl_b32 s{sT0}, s{sCT}, 6')
    g(f'v_xor_b32 v{vWA}, s{sT0}, v{vWB}')
    g(f's_cmp_lt_u32 s{sW}, 4')
    g(f's_mov_b32 s{sT0}, {L_X}')
    g(f's_cselect_b32 s{sT0}, {L_WQ}, s{sT0}')
    g(f'v_add_u32 v{vWA}, s{sT0}, v{vWA}')
    g(f's_cmp_lg_u32 s{sW}, 0')
    g('s_cbranch_scc1 L_noflag')
    g(f'v_mul_u32_u24 v{vT5}, {F1_STRIDE}, v{vL}')
    g(f'v_mov_b32 v{vT6}, s{sTAG}')
    g(f's_lshl_b32 s{sT0}, s{sID}, 4')
    g(f's_add_u32 s{sT0}, s{sT0}, {WS_F1}')
    g('s_waitcnt vmcnt(8)')
    g('s_mov_b64 exec, 0xff')
    g(f'buffer_store_dword v{vT6}, v{vT5}, {sr(SWS,4)}, s{sT0} offen sc1')
    g('s_mov_b64 exec, -1')
    g.stamp(3)
    g('s_waitcnt vmcnt(1) lgkmcnt(0)')
    g('s_branch L_bar2')
    g('L_noflag:')
    g('s_waitcnt vmcnt(0) lgkmcnt(0)')
    g('L_bar2:')
    g('s_barrier')
    g.stamp(4)
    g(f's_cmp_ge_u32 s{sW}, 4')
    g('s_cbranch_scc1 L_helper')
    g(f's_getpc_b64 {sr(sRET,2)}')
    g('L_pc1:')
    g(f's_add_u32 s{sRET}, s{sRET}, L_qdone-L_pc1')
    g(f's_addc_u32 s{sRET+1}, s{sRET+1}, 0')
    g('L_chainT:')
    chain(g, True)
    g(f's_setpc_b64 {sr(sRET,2)}')
    g('L_qdone:')
    g(f'v_and_b32 v{vT0}, 31, v{vL}')
    g(f'v_lshlrev_b32 v{vT1}, 4, v{vT0}')
    g(f's_mul_i32 s{sT0}, s{sXCD}, {F1_STRIDE + 512}')
    g(f's_add_u32 s{sT0}, s{sT0}, {WS_F1}')
    pl = f'buffer_load_dword v{vT2}, v{vT1}, {sr(SWS,4)}, s{sT0} offen sc1'
    g(pl)
    g('s_barrier')
    g.stamp(5)
    g(f'v_add_u32 v{vAK}, {L_KV}, v{vL16}')
    g(f'v_lshrrev_b32 v{vT3}, 5, v{vL}')
    g(f'v_lshlrev_b32 v{vT3}, 8, v{vT3}')
    g(f'v_add3_u32 v{vT3}, v{vT3}, v{vT1}, 0')
    g(f'v_add_u32 v{vAV0}, {L_KV + 1024}, v{vT3}')
    g(f'v_add_u32 v{vAV1}, {L_KV + 1536}, v{vT3}')
    g(f'v_mov_b32 v{vT3}, 0x40000')
    g(f'v_mov_b32 v{vT4}, {L_KV + 2048}')
    g(f'v_cmp_eq_u32 vcc, 16, v{vT0}')
    g(f's_mov_b32 s{sK0}, {f2u(0.25*LOG2E):#x}')
    g(f'v_mov_b32 v{vIDX}, 0xdddddddd')
    g(f'v_cndmask_b32 v{vT3}, v{vT3}, v{vT4}, vcc')
    g(f'v_cmp_gt_u32 vcc, 16, v{vT0}')
    for i in range(0, 16, 2):
        g(f'v_pk_mul_f32 {vr(vSA+i,2)}, {vr(vSA+i,2)}, {sr(sK0,2)} op_sel_hi:[1,0]')
    g(f'v_cndmask_b32 v{vAV0}, v{vT3}, v{vAV0}, vcc')
    g(f'v_cndmask_b32 v{vAV1}, v{vT3}, v{vAV1}, vcc')
    for i in range(8):
        g(f'v_cvt_pk_bf16_f32 v{vQ+i}, v{vSA+2*i}, v{vSA+2*i+1}')
    for i in range(vACC0, vACC0 + 32):
        g(f'v_mov_b32 v{i}, 0')
    g(f's_lshl3_add_u32 s{sT1}, s{sXCD}, s{sW}')
    g(f's_lshl_b32 s{sT1}, s{sT1}, 11')
    g(f's_add_u32 s{sT1}, s{sT1}, {WS_KV}')
    g(f's_mul_i32 s{sT2}, s{sW}, {TS}')
    g(f's_add_u32 m0, s{sT2}, {L_KV}')
    g(f's_lshl1_add_u32 s{sT3}, s{sRB}, s{sRT}')
    g(f's_lshl_b32 s{sT3}, s{sT3}, 7')
    g(f's_add_u32 s{sT3}, s{sT3}, {WS_G}')
    g(f'v_lshlrev_b32 v{vT0}, 2, v{vT0}')
    poll(g, [pl], [vT2], pre_issued=True)
    g.stamp(6)
    g(f'buffer_load_dwordx4 v{vL16}, {sr(SWS,4)}, s{sT1} offen sc1 lds')
    g(f'buffer_load_dwordx4 v{vL16}, {sr(SWS,4)}, s{sT1} offen offset:1024 sc1 lds')
    g(f's_add_u32 m0, m0, {4*TS}')
    g(f's_add_u32 s{sT1}, s{sT1}, 8192')
    g(f'buffer_load_dwordx4 v{vL16}, {sr(SWS,4)}, s{sT1} offen sc1 lds')
    g(f'buffer_load_dwordx4 v{vL16}, {sr(SWS,4)}, s{sT1} offen offset:1024 sc1 lds')
    g(f'buffer_load_dword v{vGF}, v{vT0}, {sr(SWS,4)}, s{sT3} offen sc1')
    g(f's_lshl1_add_u32 s{sT0}, s{sRB}, s{sRT}')
    g(f's_lshl_b32 s{sT0}, s{sT0}, 15')
    g(f's_lshl1_add_u32 s{sT1}, s{sHG}, s{sCT}')
    g(f's_lshl_b32 s{sT1}, s{sT1}, 11')
    g(f's_add_u32 s{sOOFF}, s{sT0}, s{sT1}')
    g(f's_add_u32 s{sOOFF}, s{sOOFF}, {WS_OA}')
    g(f's_mov_b32 s{sEPS}, 0')
    g(f's_mov_b32 s{sFB}, 0')
    g(f's_mov_b32 s{sLOOP}, 8')
    g('s_waitcnt vmcnt(0)')
    g('s_barrier')
    g.stamp(7)
    g(f'ds_read_b128 {vr(vK,4)}, v{vAK}')
    g(f'ds_read_b128 {vr(vK+4,4)}, v{vAK} offset:{TS}')
    g(f'ds_read_b128 {vr(vV0,4)}, v{vAV0}')
    g(f'ds_read_b128 {vr(vV1,4)}, v{vAV1}')
    g(f'ds_read_b128 {vr(vV0+4,4)}, v{vAV0} offset:{TS}')
    gate(g, -1.0)
    g('s_waitcnt lgkmcnt(3)')
    g(MF32(vSA, vK, vQ, '0'))
    g(MF32(vNA, vK+4, vQ, '0'))
    g(MF32(vSB, vK, vQ+4, '0'))
    g(MF32(vNB, vK+4, vQ+4, '0'))
    g('s_nop 9')
    for (S, N, T) in ((vSA, vNA, vT0), (vSB, vNB, vT1)):
        g(f'v_max3_f32 v{T}, v{S}, v{S+1}, v{S+2}')
        for i in range(3, 15, 2): g(f'v_max3_f32 v{T}, v{T}, v{S+i}, v{S+i+1}')
        g(f'v_max3_f32 v{T}, v{T}, v{S+15}, v{N}')
        for i in range(1, 15, 2): g(f'v_max3_f32 v{T}, v{T}, v{N+i}, v{N+i+1}')
        g(f'v_max_f32 v{T}, v{T}, v{N+15}')
    def setneg():
        g('s_nop 1')
        g(f'v_permlane32_swap_b32 v{vT0}, v{vT1}')
        g(f'v_max_f32 v{vT0}, v{vT0}, v{vT1}')
        g(f'v_sub_f32 v{vT0}, {f2u(-OFF):#x}, v{vT0}')
        g(f'v_mov_b32 v{vT1}, v{vT0}')
        g('s_nop 1')
        g(f'v_permlane32_swap_b32 v{vT0}, v{vT1}')
        for i in range(16): g(f'v_mov_b32 v{vNA+i}, v{vT0}')
    setneg()
    g(f'v_mov_b32 v{vNB}, v{vT1}')
    g(f'v_mov_b32 v{vNB+1}, v{vT1}')
    g(MF32(vSA, vK, vQ, vNA))
    for i in range(2, 16): g(f'v_mov_b32 v{vNB+i}, v{vT1}')
    E = lambda S, i: g(f'v_exp_f32 v{S+i}, v{S+i}')
    E(vSA, 0); E(vSA, 1)
    g('s_waitcnt lgkmcnt(0)')
    g.stamp(8)
    g('.p2align 3')
    g('L_loop:')
    NT = 8
    for t in range(NT):
        b = t & 1
        if t == NT-1: g(f'v_add_u32 v{vAV1}, {NT*TS}, v{vAV1}')
        g(f'ds_read_b128 {vr(vV1+4*(b^1),4)}, v{vAV1} offset:{((t+1)%NT)*TS}')
        for i in range(2, 7): E(vSA, i)
        g(MF32(vSB, vK+4*b, vQ+4, vNB))
        if t == NT-2: g(f'v_add_u32 v{vAK}, {NT*TS}, v{vAK}')
        g(f'ds_read_b128 {vr(vK+4*b,4)}, v{vAK} offset:{((t+2)%NT)*TS}')
        for i in range(7, 12): E(vSA, i)
        g(SMF(vACC0, vV0+4*b, vSA))
        g('s_waitcnt lgkmcnt(4)')
        for i in range(12, 16): E(vSA, i)
        E(vSB, 0); E(vSB, 1)
        g(SMF(vACC0, vV1+4*b, vSA+8))
        g('s_waitcnt lgkmcnt(3)')
        if t % 4 == 1: g('s_barrier')
        for i in range(2, 7): E(vSB, i)
        g(MF32(vSA, vK+4*(b^1), vQ, vNA))
        if t == NT-1: g(f's_sub_u32 s{sLOOP}, s{sLOOP}, 1')
        for i in range(7, 12): E(vSB, i)
        g(SMF(vACC1, vV0+4*b, vSB))
        if t == NT-1: g(f's_cmp_lg_u32 s{sLOOP}, 0')
        if t == NT-2: g(f'v_add_u32 v{vAV0}, {NT*TS}, v{vAV0}')
        g(f'ds_read_b128 {vr(vV0+4*b,4)}, v{vAV0} offset:{((t+2)%NT)*TS}')
        for i in range(12, 16): E(vSB, i)
        E(vSA, 0); E(vSA, 1)
        g(SMF(vACC1, vV1+4*b, vSB+8))
        g('s_waitcnt lgkmcnt(3)')
    g('s_cbranch_scc1 L_loop')
    g('s_waitcnt lgkmcnt(0)')
    g('s_barrier')
    g.stamp(9)
    g(f's_getpc_b64 {sr(sRET,2)}')
    g('L_pc2:')
    g(f's_add_u32 s{sRET}, s{sRET}, L_mdone-L_pc2')
    g(f's_addc_u32 s{sRET+1}, s{sRET+1}, 0')
    g('s_nop 5')
    g('L_finish:')
    g(f'v_mov_b32 v{vT0}, v{vACC0+8}')
    g(f'v_mov_b32 v{vT1}, v{vACC1+8}')
    g(f'v_maximum3_f32 v{vT2}, |v{vACC0}|, |v{vACC0+1}|, |v{vACC0+2}|')
    g(f'v_maximum3_f32 v{vT3}, |v{vACC1}|, |v{vACC1+1}|, |v{vACC1+2}|')
    g(f'v_permlane32_swap_b32 v{vT0}, v{vACC0+8}')
    g(f'v_permlane32_swap_b32 v{vT1}, v{vACC1+8}')
    g(f'v_add_f32 v{vT0}, s{sEPS}, v{vT0}')
    g(f'v_add_f32 v{vT1}, s{sEPS}, v{vT1}')
    g(f'v_rcp_f32 v{vT4}, v{vT0}')
    g(f'v_rcp_f32 v{vT6}, v{vT1}')
    for (A, T, Lr) in ((vACC0, vT2, vT0), (vACC1, vT3, vT1)):
        g(f'v_maximum3_f32 v{T}, v{T}, |v{A+3}|, |v{A+4}|')
        g(f'v_maximum3_f32 v{T}, v{T}, |v{A+5}|, |v{A+6}|')
        g(f'v_maximum3_f32 v{T}, v{T}, |v{A+7}|, |v{Lr}|')
    g(f'v_maximum3_f32 v{vT2}, v{vT2}, v{vT3}, v{vT3}')
    g(f'v_mul_f32 v{vT4}, v{vGF}, v{vT4}')
    g(f'v_mul_f32 v{vT6}, v{vGF}, v{vT6}')
    g(f'v_cmp_ngt_f32 vcc, {(127+120)<<23:#x}, v{vT2}')
    for i in range(0, 8, 2):
        g(f'v_pk_mul_f32 {vr(vACC0+i,2)}, {vr(vACC0+i,2)}, {vr(vT4,2)} op_sel_hi:[1,0]')
    for i in range(4):
        g(f'v_cvt_pk_bf16_f32 v{vACC0+i}, v{vACC0+2*i}, v{vACC0+2*i+1}')
    g('s_cbranch_vccnz L_fallback')
    g('L_fincont:')
    g(f'buffer_store_dwordx4 {vr(vACC0,4)}, v{vL16}, {sr(SWS,4)}, s{sOOFF} offen sc1')
    for i in range(0, 8, 2):
        g(f'v_pk_mul_f32 {vr(vACC1+i,2)}, {vr(vACC1+i,2)}, {vr(vT6,2)} op_sel_hi:[1,0]')
    for i in range(4):
        g(f'v_cvt_pk_bf16_f32 v{vACC1+i}, v{vACC1+2*i}, v{vACC1+2*i+1}')
    g(f'buffer_store_dwordx4 {vr(vACC1,4)}, v{vL16}, {sr(SWS,4)}, s{sOOFF} offen offset:1024 sc1')
    g(f's_setpc_b64 {sr(sRET,2)}')
    g('L_mdone:')
    g.stamp(10)
    g('s_waitcnt vmcnt(0)')
    g('s_barrier')
    g.stamp(11)
    g('s_branch L_exit')

    g('L_helper:')
    g('s_setprio 2')
    g(f'v_lshrrev_b32 v{vT0}, 3, v{vL}')
    g(f'v_lshl_add_u32 v{vWD}, v{vT0}, 11, v{vWD}')
    wload_call(g, L_X, sPWQKV, 0x180000, 3072, sHG, 1024)
    g(f's_mul_i32 s{sT5}, s{sXCD}, {F1_STRIDE}')
    g(f's_add_u32 s{sT5}, s{sT5}, {WS_F1}')
    g('s_waitcnt vmcnt(0)')
    g('s_barrier')
    g.stamp(5)
    pads(g, 0, 32)
    g(f's_getpc_b64 {sr(sRET,2)}')
    g('L_pc3:')
    g(f's_add_u32 s{sRET}, s{sRET}, L_kdone-L_pc3')
    g(f's_addc_u32 s{sRET+1}, s{sRET+1}, 0')
    g('L_chainN:')
    chain(g, False)
    g(f's_setpc_b64 {sr(sRET,2)}')
    g('L_kdone:')
    pls = [f'buffer_load_dword v{vT0+i}, v{vL16}, {sr(SWS,4)}, s{sT5} offen offset:{1024*i} sc1' for i in range(4)]
    for l in pls: g(l)
    g.stamp(6)
    g('s_barrier')
    g.stamp(7)
    poll(g, pls, [vT0, vT1, vT2, vT3], pre_issued=True)
    kvload(g, 8, 2)
    wload_call(g, L_X, sPWQKV, 0x180000, 3072, sHG, 2048)
    g('s_barrier')
    g(f's_lshl_b32 s{sT0}, s2, 3')
    g(f's_add_u32 s{sT0}, s{sT0}, s{sW}')
    g(f's_cmp_eq_u32 s{sT0}, 4')
    g(f's_cselect_b32 s{sT0}, {WS_EPOCH}, s{SWS+2}')
    g(f'v_mov_b32 v{vT0}, s{sTAG}')
    g('s_mov_b64 exec, 1')
    g(f'buffer_store_dword v{vT0}, off, {sr(SWS,4)}, s{sT0} sc1')
    g('s_mov_b64 exec, -1')
    g(f's_lshl1_add_u32 s{sT3}, s{sRB}, s{sRT}')
    g(f's_lshl_b32 s{sT3}, s{sT3}, 7')
    g(f's_add_u32 s{sT3}, s{sT3}, {WS_G}')
    g(f'v_and_b32 v{vT0}, 31, v{vL}')
    g(f'v_lshlrev_b32 v{vT0}, 2, v{vT0}')
    g(f'buffer_load_dword v{vGF}, v{vT0}, {sr(SWS,4)}, s{sT3} offen sc1')
    kvload(g, 16, 4)
    g(f's_call_b64 {sr(sRET,2)}, L_phi')
    for i in range(8): g(f'v_mov_b32 v{vPK+i}, v{vPQ+i}')
    g('s_waitcnt vmcnt(8)')
    g('s_barrier')
    g(f's_call_b64 {sr(sRET,2)}, L_chainN')
    g('s_waitcnt vmcnt(0)')
    g('s_barrier')
    wload_call(g, L_X, sPWQKV, 0x180000, 3072, sHG, 0)
    for i in range(8):
        g(f'v_cvt_pk_bf16_f32 v{vVB+i}, v{vSA+2*i}, v{vSA+2*i+1}')
    for i in range(4): g(f'v_mov_b32 v{vONE+i}, 0x3f803f80')
    g(f'v_and_b32 v{vT0}, 16, v{vL}')
    g(f'v_cmp_eq_u32 vcc, 0, v{vT0}')
    g(MF32(vSA, vPK, vVB, '0'))
    g(MF32(vSA, vPK+4, vVB+4, vSA))
    g(MF32(vSB, vONE, vPK, '0'))
    g(MF32(vSB, vONE, vPK+4, vSB))
    g(f'v_lshlrev_b32 v{vT1}, 2, v{vL}')
    g(f'v_bfe_u32 v{vT2}, v{vL}, 3, 1')
    g(f'v_and_b32 v{vT3}, 3, v{vL}')
    g(f'v_lshl_or_b32 v{vT2}, v{vT2}, 2, v{vT3}')
    g(f'v_lshlrev_b32 v{vT2}, 9, v{vT2}')
    g(f'v_lshrrev_b32 v{vT3}, 1, v{vT0}')
    g(f'v_and_b32 v{vT4}, 4, v{vL}')
    g(f'v_add3_u32 v{vT2}, v{vT2}, v{vT3}, v{vT4}')
    g(f's_lshl1_add_u32 s{sT4}, s{sHG}, s{sCT}')
    g(f's_lshl_b32 s{sT4}, s{sT4}, 12')
    g(f's_add_u32 s{sT4}, s{sT4}, {WS_KVACC}')
    g('s_nop 0')
    for i in range(8):
        g(f'v_cndmask_b32 v{vSA+i}, v{vSA+8+i}, v{vSA+i}, vcc')
    for i in range(8):
        g(f'buffer_atomic_add_f32 v{vSA+i}, v{vT1}, {sr(SWS,4)}, s{sT4} offen offset:{512*i}')
    g('s_mov_b32 exec_hi, 0')
    g(f'buffer_atomic_add_f32 v{vSB}, v{vT2}, {sr(SWS,4)}, s{sT4} offen offset:256')
    g('s_mov_b64 exec, -1')
    g('s_waitcnt vmcnt(0)')
    g('s_barrier')
    def flagstore(base, a, sh, b):
        g(f's_lshl_b32 s{sT0}, s{a}, {sh}')
        g(f's_lshl4_add_u32 s{sT0}, s{b}, s{sT0}')
        g(f's_add_u32 s{sT0}, s{sT0}, {base}')
        g(f's_cmp_eq_u32 s{sW}, 4')
        g(f's_cselect_b32 s{sT0}, s{sT0}, s{SWS+2}')
        g(f'v_mov_b32 v{vT0}, s{sTAG}')
        g('s_mov_b64 exec, 1')
        g(f'buffer_store_dword v{vT0}, off, {sr(SWS,4)}, s{sT0} sc1')
        g('s_mov_b64 exec, -1')
    flagstore(WS_F2, sHG, 9, sRB)
    g(f's_call_b64 {sr(sRET,2)}, L_chainT')
    g('s_barrier')
    kvload(g, 32, 8)
    pads(g, 32, 64)
    g(f's_call_b64 {sr(sRET,2)}, L_phi')
    gate(g, 1.0)
    g('s_waitcnt vmcnt(0) lgkmcnt(0)')
    g('s_barrier')
    g(f'v_lshrrev_b32 v{vT0}, 3, v{vL}')
    g(f'v_lshlrev_b32 v{vT0}, 11, v{vT0}')
    g(f'v_sub_u32 v{vWD}, v{vWD}, v{vT0}')
    g(f'v_and_b32 v{vT0}, 31, v{vL}')
    g(f'v_lshlrev_b32 v{vT1}, 4, v{vT0}')
    g(f's_lshl_b32 s{sT0}, s{sHG}, 9')
    g(f's_add_u32 s{sT0}, s{sT0}, {WS_F2}')
    poll(g, [f'buffer_load_dword v{vT2}, v{vT1}, {sr(SWS,4)}, s{sT0} offen sc1'], [vT2])
    g(f'v_lshrrev_b32 v{vT2}, 5, v{vL}')
    g(f'v_lshl_add_u32 v{vT2}, v{vT2}, 2, 0')
    g(f'v_add_u32 v{vT2}, 256, v{vT2}')
    g(f'v_lshlrev_b32 v{vT3}, 2, v{vL}')
    g(f'v_cmp_gt_u32 vcc, 16, v{vT0}')
    g(f'v_add_u32 v{vT4}, 8, v{vT2}')
    g(f'v_add_u32 v{vT5}, 64, v{vT3}')
    g(f'v_cndmask_b32 v{vT2}, v{vT2}, v{vT3}, vcc')
    g(f'v_cndmask_b32 v{vT4}, v{vT4}, v{vT5}, vcc')
    for i in range(8):
        g(f'buffer_load_dword v{vSA+i}, v{vT2}, {sr(SWS,4)}, s{sT4} offen offset:{512*i} sc1')
        g(f'buffer_load_dword v{vSA+8+i}, v{vT4}, {sr(SWS,4)}, s{sT4} offen offset:{512*i} sc1')
    g('s_barrier')
    g(f's_lshl1_add_u32 s{sT0}, s{sRB}, s{sRT}')
    g(f's_lshl_b32 s{sT0}, s{sT0}, 15')
    g(f's_lshl1_add_u32 s{sT1}, s{sHG}, s{sCT}')
    g(f's_lshl_b32 s{sT1}, s{sT1}, 11')
    g(f's_add_u32 s{sOOFF}, s{sT0}, s{sT1}')
    g(f's_add_u32 s{sT2}, s{sOOFF}, {WS_OA}')
    g(f's_add_u32 s{sOOFF}, s{sOOFF}, {WS_OB}')
    g(f's_mov_b32 s{sEPS}, {f2u(1e-6):#x}')
    g(f's_mov_b32 s{sFB}, 1')
    for i in range(4): g(f'v_mov_b32 v{vT0+i}, -1')
    g('s_waitcnt vmcnt(0)')
    g(f'buffer_store_dwordx4 {vr(vT0,4)}, v{vL16}, {sr(SWS,4)}, s{sT2} offen sc1')
    g(f'buffer_store_dwordx4 {vr(vT0,4)}, v{vL16}, {sr(SWS,4)}, s{sT2} offen offset:1024 sc1')
    for i in range(8):
        g(f'v_cvt_pk_bf16_f32 v{vSA+i}, v{vSA+2*i}, v{vSA+2*i+1}')
    g('s_nop 1')
    g(MF32(vACC0, vSA, vPQ, '0'))
    g(MF32(vACC1, vSA+4, vPQ+4, '0'))
    g('s_nop 10')
    g(f's_call_b64 {sr(sRET,2)}, L_finish')
    g('s_waitcnt vmcnt(0)')
    g('s_barrier')
    flagstore(WS_F3, sRB, 7, sHG)
    wload_call(g, L_WOB, sPWOB, 0x80000, 1024, sHG, 0)
    g('s_barrier')
    g('s_barrier')
    g(f'v_and_b32 v{vT0}, 7, v{vL}')
    g(f'v_lshlrev_b32 v{vT1}, 4, v{vT0}')
    g(f's_lshl_b32 s{sT0}, s{sRB}, 7')
    g(f's_add_u32 s{sT0}, s{sT0}, {WS_F3}')
    poll(g, [f'buffer_load_dword v{vT2}, v{vT1}, {sr(SWS,4)}, s{sT0} offen sc1'], [vT2])
    g(f's_lshl1_add_u32 s{sT0}, s{sRB}, s{sRT}')
    g(f's_lshl1_add_u32 s{sT0}, s{sT0}, s{sCT}')
    g(f's_lshl_b32 s{sT0}, s{sT0}, 14')
    g(f's_add_u32 s{sOOFF}, s{sT0}, {WS_OB}')
    g(f's_call_b64 {sr(sRET,2)}, L_oload')
    g(f's_add_u32 s{sOOFF}, s{sT0}, {WS_OA}')
    g('s_barrier')
    g(f'v_and_b32 v{vT0}, 32, v{vL}')
    g(f'v_lshlrev_b32 v{vT0}, 4, v{vT0}')
    g(f'v_sub_u32 v{vWA}, v{vWB}, v{vT0}')
    g(f's_mul_i32 s{sT1}, s{sCT}, 0x8040')
    g(f'v_xor_b32 v{vWA}, s{sT1}, v{vWA}')
    g(f'v_xor_b32 v{vWB}, 64, v{vWA}')
    for i in range(vACC0, vACC0 + 32): g(f'v_mov_b32 v{i}, 0')
    g('s_barrier')
    g('s_barrier')
    wload_call(g, L_WOA, sPWOA, 0x80000, 1024, sHG, 0)
    g('s_barrier')
    g.srd(SO, sPOUT, 0x200000)
    g(f's_mov_b32 s{SO+3}, 0x20000')
    g(f'v_and_b32 v{vT0}, 31, v{vL}')
    g(f'v_lshlrev_b32 v{vT0}, 10, v{vT0}')
    g(f'v_lshrrev_b32 v{vT1}, 5, v{vL}')
    g(f'v_lshl_or_b32 v{vXE}, v{vT1}, 4, v{vT0}')
    g(f's_lshl1_add_u32 s{sT0}, s{sRB}, s{sRT}')
    g(f's_lshl_b32 s{sT0}, s{sT0}, 15')
    g(f's_lshl1_add_u32 s{sT1}, s{sHG}, s{sCT}')
    g(f's_lshl_b32 s{sT1}, s{sT1}, 6')
    g(f's_add_u32 s{sT5}, s{sT0}, s{sT1}')
    g(f's_and_b32 s{sT0}, s{sW}, 3')
    g(f's_lshl_b32 s{sT0}, s{sT0}, 12')
    g(f's_add_u32 s{sT0}, s{sT0}, {L_RED}')
    g(f'v_add_u32 v{vXO}, s{sT0}, v{vL16}')
    g(f'v_xor_b32 v{vWD}, 0x2000, v{vXO}')
    g('s_waitcnt vmcnt(0)')
    g('s_barrier')
    g('s_barrier')
    g('s_barrier')
    g.stamp(9)
    g(f's_call_b64 {sr(sRET,2)}, L_oproj')
    g(f'v_add_u32 v{vWA}, {L_WOA}, v{vWA}')
    g(f'v_add_u32 v{vWB}, {L_WOA}, v{vWB}')
    g(f's_mov_b32 s{sCNT}, {POLL_MAX}')
    g.stamp(10)
    g('s_barrier')
    g.stamp(11)
    g(f's_call_b64 {sr(sRET,2)}, L_oload')
    for i in range(32): g(f'v_mov_b32 v{vSAVE+i}, v{vACC0+i}')
    g('L_retry:')
    g(f's_call_b64 {sr(sRET,2)}, L_oproj')
    g(f'v_cmp_eq_u32 vcc, -1, v{vT0}')
    g(f's_sub_u32 s{sCNT}, s{sCNT}, 1')
    g('s_cbranch_scc1 L_ogood')
    g('s_cbranch_vccz L_ogood')
    g(f's_call_b64 {sr(sRET,2)}, L_oload')
    for i in range(32): g(f'v_mov_b32 v{vACC0+i}, v{vSAVE+i}')
    g('s_branch L_retry')
    g('L_ogood:')
    g.stamp(12)
    g('s_nop 7')
    for i in range(4): g(f'ds_write_b128 v{vXO}, {vr(vACC1+4*i,4)} offset:{1024*i}')
    g('s_waitcnt lgkmcnt(0)')
    g('s_barrier')
    for i in range(4): g(f'ds_read_b128 {vr(vSA+4*i,4)}, v{vWD} offset:{1024*i}')
    for p in range(2):
        g(f's_waitcnt lgkmcnt({2-2*p})')
        for i in range(8*p, 8*p+8, 2):
            g(f'v_pk_add_f32 {vr(vACC0+i,2)}, {vr(vACC0+i,2)}, {vr(vSA+i,2)}')
        for i in range(4):
            g(f'v_cvt_pk_bf16_f32 v{vSB+4*p+i}, v{vACC0+8*p+2*i}, v{vACC0+8*p+2*i+1}')
        g('s_nop 1')
        g(f'v_permlane32_swap_b32 v{vSB+4*p}, v{vSB+4*p+2}')
        g(f'v_permlane32_swap_b32 v{vSB+4*p+1}, v{vSB+4*p+3}')
        g(f'buffer_store_dwordx4 {vr(vSB+4*p,4)}, v{vXE}, {sr(SO,4)}, s{sT5} offen offset:{32*p}')
    g.stamp(13)
    g('L_exit:')
    if stamps:
        g('s_waitcnt vmcnt(0)')
        g.stamp(14)
        g(f's_lshl_b32 s{sT0}, s2, 3')
        g(f's_add_u32 s{sT0}, s{sT0}, s{sW}')
        g(f's_lshl_b32 s{sT0}, s{sT0}, 6')
        g(f's_add_u32 s{sT0}, s{sT0}, {WS_STAMP}')
        g(f'v_lshlrev_b32 v{vT0}, 2, v{vL}')
        g('s_mov_b64 exec, 0xffff')
        g(f'buffer_store_dword v{vT7}, v{vT0}, {sr(SWS,4)}, s{sT0} offen')
    g('L_end:')
    g('s_endpgm')

    g('L_oproj:')
    def ord_(i):
        r = vRING + 8 * (i & 1)
        g(f'ds_read_b64_tr_b16 {vr(r,2)}, v{vWA} offset:{i*2048}')
        g(f'ds_read_b64_tr_b16 {vr(r+2,2)}, v{vWA} offset:{i*2048+1024}')
        g(f'ds_read_b64_tr_b16 {vr(r+4,2)}, v{vWB} offset:{i*2048}')
        g(f'ds_read_b64_tr_b16 {vr(r+6,2)}, v{vWB} offset:{i*2048+1024}')
    ord_(0); ord_(1)
    g(f'v_mov_b32 v{vT0}, 0')
    for i in range(16):
        r = vRING + 8 * (i & 1); ob = vOB + 4*i
        g(f's_waitcnt vmcnt({15-i}) lgkmcnt({4 if i < 15 else 0})')
        g(MF32(vACC0, r, ob, vACC0))
        g(f'v_max3_u32 v{vT0}, v{vT0}, v{ob}, v{ob+1}')
        g(f'v_max3_u32 v{vT0}, v{vT0}, v{ob+2}, v{ob+3}')
        g(MF32(vACC1, r+4, ob, vACC1))
        if i + 2 < 16: ord_(i + 2)
    g(f's_setpc_b64 {sr(sRET,2)}')
    g('L_oload:')
    g(f's_mov_b32 s{sT1}, s{sOOFF}')
    for i in range(16):
        g(f'buffer_load_dwordx4 {vr(vOB+4*i,4)}, v{vL16}, {sr(SWS,4)}, s{sT1} offen offset:{(i&3)*1024} sc1')
        if i & 3 == 3 and i < 15: g(f's_add_u32 s{sT1}, s{sT1}, 4096')
    g(f's_setpc_b64 {sr(sRET,2)}')
    g('L_kvload:')
    g(f's_lshl3_add_u32 s{sT1}, s{sXCD}, s{sT0}')
    g(f's_and_b32 s{sT1}, s{sT1}, 63')
    g(f's_lshl_b32 s{sT1}, s{sT1}, 11')
    g(f's_mul_i32 s{sT2}, s{sT0}, {TS}')
    g(f's_add_u32 m0, s{sT2}, {L_KV}')
    g(f's_add_u32 s{sT1}, s{sT1}, {WS_KV}')
    g(f'buffer_load_dwordx4 v{vL16}, {sr(SWS,4)}, s{sT1} offen sc1 lds')
    g(f'buffer_load_dwordx4 v{vL16}, {sr(SWS,4)}, s{sT1} offen offset:1024 sc1 lds')
    g(f's_add_u32 s{sT0}, s{sT0}, 4')
    g(f's_sub_u32 s{sCNT}, s{sCNT}, 1')
    g(f's_cmp_lg_u32 s{sCNT}, 0')
    g('s_cbranch_scc1 L_kvload')
    g(f's_setpc_b64 {sr(sRET,2)}')
    g('L_phi:')
    phi(g, vPQ)
    g(f's_setpc_b64 {sr(sRET,2)}')

    g('L_fallback:')
    g(f's_cmp_lg_u32 s{sFB}, 0')
    g('s_cbranch_scc1 L_fincont')
    g(f's_mov_b32 s{sFB}, 1')
    g(f'v_mov_b32 v{vT0}, 0xff7fffff')
    g(f'v_mov_b32 v{vT1}, 0xff7fffff')
    g(f's_mov_b32 s{sT0}, {WS_KV}')
    g('L_fb1:')
    g(f'buffer_load_dwordx4 {vr(vK,4)}, v{vL16}, {sr(SWS,4)}, s{sT0} offen sc1')
    g('s_waitcnt vmcnt(0)')
    g(MF32(vSA, vK, vQ, '0'))
    g(MF32(vSB, vK, vQ+4, '0'))
    g('s_nop 11')
    for (S, T) in ((vSA, vT0), (vSB, vT1)):
        for i in range(0, 16, 2): g(f'v_max3_f32 v{T}, v{T}, v{S+i}, v{S+i+1}')
    g(f's_add_u32 s{sT0}, s{sT0}, 2048')
    g(f's_cmp_lt_u32 s{sT0}, {WS_KV + 64*2048}')
    g('s_cbranch_scc1 L_fb1')
    setneg()
    for i in range(16): g(f'v_mov_b32 v{vNB+i}, v{vT1}')
    for i in range(vACC0, vACC0 + 32): g(f'v_mov_b32 v{i}, 0')
    one = (127 + VSC) << 7
    for i in range(8): g(f'v_mov_b32 v{vV0+i}, {(one << 16) | one:#x}')
    g(f'v_lshrrev_b32 v{vT2}, 5, v{vL}')
    g(f'v_and_b32 v{vT3}, 15, v{vL}')
    g(f'v_lshl_or_b32 v{vT2}, v{vT2}, 4, v{vT3}')
    g(f'v_lshlrev_b32 v{vT2}, 4, v{vT2}')
    g(f's_mov_b32 s{sMSK}, 0xffff')
    g(f's_mov_b32 s{sMSK+1}, 0xffff')
    g(f's_mov_b32 s{sT0}, {WS_KV}')
    g('L_fb2:')
    g(f'buffer_load_dwordx4 {vr(vK,4)}, v{vL16}, {sr(SWS,4)}, s{sT0} offen sc1')
    g(f's_mov_b64 exec, {sr(sMSK,2)}')
    g(f'buffer_load_dwordx4 {vr(vV0,4)}, v{vT2}, {sr(SWS,4)}, s{sT0} offen offset:1024 sc1')
    g(f'buffer_load_dwordx4 {vr(vV0+4,4)}, v{vT2}, {sr(SWS,4)}, s{sT0} offen offset:1536 sc1')
    g('s_mov_b64 exec, -1')
    g('s_waitcnt vmcnt(0)')
    g(MF32(vSA, vK, vQ, vNA))
    g(MF32(vSB, vK, vQ+4, vNB))
    g('s_nop 11')
    for i in range(32): E(vSA, i)
    g('s_nop 1')
    g(SMF(vACC0, vV0, vSA))
    g(SMF(vACC0, vV0+4, vSA+8))
    g(SMF(vACC1, vV0, vSB))
    g(SMF(vACC1, vV0+4, vSB+8))
    g(f's_add_u32 s{sT0}, s{sT0}, 2048')
    g(f's_cmp_lt_u32 s{sT0}, {WS_KV + 64*2048}')
    g('s_cbranch_scc1 L_fb2')
    g('s_nop 11')
    g('s_branch L_finish')
    return g


HEAD = open('cdna_kernels/' + NAME + '.s.ref').read().split('; Override launch')[0]

def text(g):
    s = HEAD
    s += '; Generated by a script of the author (fused single-launch kernel, 256 co-resident workgroups).\n'
    s += f'; @launch grid=(256,1,1) block=(512,1,1) lds={LDS_SIZE}\n'
    s += '.amdgcn_target "amdgcn-amd-amdhsa--gfx950"\n.text\n'
    s += f'.globl {NAME}_kernel\n.p2align 8\n.type {NAME}_kernel,@function\n'
    s += '\n'.join(g.L) + '\n'
    s += f'''.section .rodata,"a"
.p2align 6
.amdhsa_kernel {NAME}_kernel
  .amdhsa_next_free_vgpr 256
  .amdhsa_next_free_sgpr 102
  .amdhsa_accum_offset 256
  .amdhsa_group_segment_fixed_size 0
  .amdhsa_kernarg_size 96
  .amdhsa_user_sgpr_count 2
  .amdhsa_user_sgpr_kernarg_segment_ptr 1
  .amdhsa_system_sgpr_workgroup_id_x 1
.end_amdhsa_kernel
'''
    return s


if __name__ == '__main__':
    out = sys.argv[1] if len(sys.argv) > 1 else 'cdna_kernels/' + NAME + '.s'
    st = 'stamps' in sys.argv[2:]
    opts = dict(a.split('=') for a in sys.argv[2:] if '=' in a)
    g = build(st, opts)
    open(out, 'w').write(text(g))
    import hazard
    hazard.check(g.L)
```
